```python
import torch

def _softmax(x, axis=-1):
    return torch.softmax(x, dim=axis)

def _gelu(x):
    return torch.nn.functional.gelu(x, approximate='tanh')

def _silu(x):
    return torch.nn.functional.silu(x)

def _sigmoid(x):
    return torch.sigmoid(x)

def _layernorm(x, axis=-1, eps=1e-05):
    m = x.mean(dim=axis, keepdim=True)
    v = x.var(dim=axis, keepdim=True, unbiased=False)
    return (x - m) / torch.sqrt(v + eps)

def _scatter_add(tgt, idx, src, axis=0):
    return tgt.clone().index_add_(axis, idx, src)

def _segment_sum(src, seg, n):
    out = torch.zeros((n,) + src.shape[1:], dtype=src.dtype)
    return out.index_add_(0, seg, src)

def _pad(x, pw):
    flat = tuple((v for pair in reversed(pw) for v in pair))
    return torch.nn.functional.pad(x, flat)
kernel_name = 'adaLN_cond__sliding_block_cached__swiglu_ffn__prompt'

def setup_inputs():

    _w = lambda a: (lambda t: t.to(torch.bfloat16) if t.is_floating_point() else t)(torch.as_tensor(a))

    def _A_setup():
        B, Sq, D = (1, 2048, 576)
        Hq, Hkv, Sk, Dh = (32, 16, 2048, 128)
        assert Hq % Hkv == 0, (Hq, Hkv)
        return {'x': _w((lambda *s: torch.randn(*s, dtype=torch.bfloat16) * 0.05)(B, Sq, D)), 'k_cache': _w((lambda *s: torch.randn(*s, dtype=torch.bfloat16) * 3.2)(B, Hkv, Sk, Dh)), 'v_cache': _w((lambda *s: torch.randn(*s, dtype=torch.bfloat16) * 0.4)(B, Hkv, Sk, Dh)), 'wq': _w((lambda *s: torch.randn(*s, dtype=torch.bfloat16) * 3.2)(D, Hq * Dh) * D ** (-0.5)), 'wo': _w((lambda *s: torch.randn(*s, dtype=torch.bfloat16) * 0.4)(Hq * Dh, D) * (Hq * Dh) ** (-0.5))}
    _A_in = _A_setup()

    def _B_setup():
        B, S, D, F = (1, 2048, 576, 4608)
        return {'x': _w((lambda *s: torch.randn(*s, dtype=torch.bfloat16) * 0.05)(B, S, D)), 'w_gate': _w((lambda *s: torch.randn(*s, dtype=torch.bfloat16) * 0.05)(D, F)), 'w_up': _w((lambda *s: torch.randn(*s, dtype=torch.bfloat16) * 0.05)(D, F)), 'w_down': _w((lambda *s: torch.randn(*s, dtype=torch.bfloat16) * 0.05)(F, D))}
    _B_in = _B_setup()
    return {'A_x': _A_in['x'], 'A_k_cache': _A_in['k_cache'], 'A_v_cache': _A_in['v_cache'], 'A_wq': _A_in['wq'], 'A_wo': _A_in['wo'], 'B_x': _B_in['x'], 'B_w_gate': _B_in['w_gate'], 'B_w_up': _B_in['w_up'], 'B_w_down': _B_in['w_down'], 'c': _w((lambda *s: torch.randn(*s, dtype=torch.bfloat16) * 0.1)(1, 576) * 8.0), 'w_mod': _w((lambda *s: torch.randn(*s, dtype=torch.bfloat16) * 0.1)(576, 6 * 576) * 576 ** (-0.5) * 8.0)}

def reference(A_x, A_k_cache, A_v_cache, A_wq, A_wo, B_x, B_w_gate, B_w_up, B_w_down, c, w_mod):

    def _A_ref(x, k_cache, v_cache, wq, wo):
        B, Sq, D = x.shape
        Hq, Dh = (32, 128)
        Hkv, Sk = (k_cache.shape[1], k_cache.shape[2])
        W = min(4096, max(256, Sk // 4))
        rep = Hq // Hkv
        q = (lambda x, *d: x.permute(*d))((x @ wq).reshape(B, Sq, Hq, Dh), 0, 2, 1, 3)
        k = (lambda x, n, axis: torch.repeat_interleave(x, n, dim=axis))(k_cache[:, :, Sk - W:, :], rep, axis=1)
        v = (lambda x, n, axis: torch.repeat_interleave(x, n, dim=axis))(v_cache[:, :, Sk - W:, :], rep, axis=1)
        scores = torch.einsum('bhqd,bhkd->bhqk', q, k) * Dh ** (-0.5)
        p = _softmax(scores, axis=-1)
        o = torch.einsum('bhqk,bhkd->bhqd', p, v)
        return (lambda x, *d: x.permute(*d))(o, 0, 2, 1, 3).reshape(B, Sq, Hq * Dh) @ wo

    def _B_ref(x, w_gate, w_up, w_down):
        g = _silu(x @ w_gate)
        u = x @ w_up
        return g * u @ w_down
    x = A_x
    mod = (_silu(c) @ w_mod).reshape(c.shape[0], 6, 1, -1)
    sa, ca, ga, sb, cb, gb = (mod[:, 0].clone(), mod[:, 1].clone(), mod[:, 2].clone(), mod[:, 3].clone(), mod[:, 4].clone(), mod[:, 5].clone())
    h = _layernorm(x, axis=-1) * (1 + ca) + sa
    x = x + ga * _A_ref(h, A_k_cache, A_v_cache, A_wq, A_wo)
    h = _layernorm(x, axis=-1) * (1 + cb) + sb
    x = x + gb * _B_ref(h, B_w_gate, B_w_up, B_w_down)
    return x
```

```python
import re


class R:
    def __init__(self, f, lo, n=1):
        self.f, self.lo, self.n = f, lo, n

    def __str__(self):
        if self.n == 1:
            return f"{self.f}{self.lo}"
        return f"{self.f}[{self.lo}:{self.lo + self.n - 1}]"

    __repr__ = __str__

    def regs(self):
        return [(self.f, self.lo + i) for i in range(self.n)]

    def __getitem__(self, i):
        if isinstance(i, slice):
            st = i.start or 0
            en = self.n if i.stop is None else i.stop
            assert 0 <= st < en <= self.n, (self, i)
            return R(self.f, self.lo + st, en - st)
        assert 0 <= i < self.n, (self, i)
        return R(self.f, self.lo + i, 1)

    def sub(self, off, n):
        assert 0 <= off and off + n <= self.n, (self, off, n)
        return R(self.f, self.lo + off, n)


def v(lo, n=1):
    return R('v', lo, n)


def a(lo, n=1):
    return R('a', lo, n)


def s(lo, n=1):
    return R('s', lo, n)


VCC = R('s', 106, 2)
M0 = R('s', 124, 1)
EXEC = R('s', 126, 2)
SCC = ('scc', 0)


def _txt(x):
    if isinstance(x, R):
        if x.f == 's' and x.lo == 106 and x.n == 2:
            return 'vcc'
        if x.f == 's' and x.lo == 124:
            return 'm0'
        if x.f == 's' and x.lo == 126 and x.n == 2:
            return 'exec'
        return str(x)
    if isinstance(x, float):
        import struct
        if x in (0.5, -0.5, 1.0, -1.0, 2.0, -2.0, 4.0, -4.0):
            return repr(x)
        if x == 0.0:
            return '0'
        return hex(struct.unpack('<I', struct.pack('<f', x))[0])
    if isinstance(x, int):
        if -16 <= x <= 64:
            return str(x)
        return hex(x & 0xffffffff)
    return str(x)


class Mod:
    def __init__(self, r, fmt):
        self.r, self.fmt = r, fmt

    def __str__(self):
        return self.fmt % _txt(self.r)


def neg(r):
    return Mod(r, '-%s')


def absr(r):
    return Mod(r, 'abs(%s)')


def _regs(x):
    if isinstance(x, Mod):
        x = x.r
    if isinstance(x, R):
        return x.regs()
    return []


TRANS = ('v_exp_f32', 'v_log_f32', 'v_rcp_f32', 'v_rsq_f32', 'v_sqrt_f32', 'v_sin_f32', 'v_cos_f32')


class Ins:
    __slots__ = ('text', 'kind', 'wr', 'rd', 'passes', 'srcc', 'srcab', 'tag', 'ws', 'wide', 'op', 'dpp')

    def __init__(self, text, kind, wr=(), rd=(), **kw):
        self.text, self.kind = text, kind
        self.wr, self.rd = list(wr), list(rd)
        self.passes = kw.get('passes', 0)
        self.srcc = kw.get('srcc', [])
        self.srcab = kw.get('srcab', [])
        self.tag = kw.get('tag')
        self.ws = kw.get('ws', 1)
        self.wide = kw.get('wide', [])
        self.op = kw.get('op', text.split()[0] if text else '')
        self.dpp = kw.get('dpp', False)


class K:
    def __init__(self, name):
        self.name = name
        self.ins = []
        self.maxv = 0
        self.maxa = -1
        self.maxs = 0
        self.lds_age = 160
        self.mfma_paced = False

    def add(self, i):
        self.ins.append(i)
        return i

    def mk(self, op, dst, srcs, kind, suffix='', extra_wr=(), extra_rd=(), **kw):
        ops = ([dst] if dst is not None else []) + list(srcs)
        text = op + ' ' + ', '.join(str(o) if isinstance(o, Mod) else _txt(o) for o in ops) + (' ' + suffix if suffix else '')
        wr = _regs(dst) + list(extra_wr)
        rd = [r for x in srcs for r in _regs(x)] + list(extra_rd)
        return Ins(text, kind, wr, rd, **kw)

    def valu(self, op, dst, *srcs, suffix='', add=True):
        kind = 'trans' if op in TRANS else 'valu'
        extra_rd, extra_wr = [], []
        if op.startswith('v_fmac') or op.startswith('v_dot2c') or op.startswith('v_permlane'):
            extra_rd += _regs(dst)
        if op.startswith('v_permlane'):
            extra_wr += _regs(srcs[0])
        dpp = 'dpp' in op or 'quad_perm' in suffix or 'row_' in suffix
        if dpp:
            extra_rd += _regs(dst)
        i = self.mk(op, dst, srcs, kind, suffix, extra_wr, extra_rd, dpp=dpp)
        return self.add(i) if add else i

    def salu(self, op, dst, *srcs, add=True):
        extra_wr, extra_rd = [], []
        if op.startswith('s_cmp') or op.startswith('s_bitcmp'):
            srcs = (dst,) + srcs
            dst = None
            extra_wr.append(SCC)
        elif not (op.startswith('s_mov') or op.startswith('s_movk') or op.startswith('s_mul') or op.startswith('s_getreg')
                  or op.startswith('s_cselect') or op.startswith('s_getpc')):
            extra_wr.append(SCC)
        if op.startswith('s_cselect') or op.startswith('s_addc') or op.startswith('s_subb'):
            extra_rd.append(SCC)
        if 'saveexec' in op:
            extra_wr += EXEC.regs()
            extra_rd += EXEC.regs()
        i = self.mk(op, dst, srcs, 'salu', '', extra_wr, extra_rd)
        return self.add(i) if add else i

    def mfma(self, shape, d, A, B, C, add=True):
        op = {32: 'v_mfma_f32_32x32x16_bf16', 16: 'v_mfma_f32_16x16x32_bf16'}[shape]
        passes = {32: 8, 16: 4}[shape]
        i = self.mk(op, d, (A, B, C), 'mfma', passes=passes, srcc=_regs(C), srcab=_regs(A) + _regs(B))
        return self.add(i) if add else i

    def ds_read(self, op, dst, addr, offset=0, add=True):
        assert 0 <= offset < 65536, offset
        i = self.mk(op, dst, (addr,), 'ds_read', f'offset:{offset}' if offset else '')
        return self.add(i) if add else i

    def ds_write(self, op, addr, data, offset=0, add=True):
        assert 0 <= offset < 65536, offset
        i = self.mk(op, None, (addr, data), 'ds_write', f'offset:{offset}' if offset else '')
        return self.add(i) if add else i

    def bload(self, op, dst, voff, srd, soff=0, offset=0, flags='', tag=None, add=True):
        assert 0 <= offset < 4096, offset
        sfx = 'offen' + (f' offset:{offset}' if offset else '') + (' ' + flags if flags else '')
        i = self.mk(op, dst, (voff, srd, soff), 'vm_load', sfx, tag=tag)
        return self.add(i) if add else i

    def bstore(self, op, data, voff, srd, soff=0, offset=0, flags='', tag=None, add=True):
        assert 0 <= offset < 4096, offset
        sfx = 'offen' + (f' offset:{offset}' if offset else '') + (' ' + flags if flags else '')
        wide = _regs(data) if data.n >= 3 else []
        i = self.mk(op, None, (data, voff, srd, soff), 'vm_store', sfx, tag=tag, wide=wide)
        return self.add(i) if add else i

    def dma(self, voff, srd, soff=0, offset=0, flags='', tag=None, add=True):
        assert 0 <= offset < 4096, offset
        sfx = 'offen' + (f' offset:{offset}' if offset else '') + ' lds' + (' ' + flags if flags else '')
        i = self.mk('buffer_load_dwordx4', None, (voff, srd, soff), 'dma', sfx, extra_rd=M0.regs(), tag=tag)
        return self.add(i) if add else i

    def sload(self, op, dst, base, offset):
        i = self.mk(op, dst, (base, offset), 'smem')
        return self.add(i)

    def wait_tag(self, tag, add=True):
        i = Ins('', 'wait_tag', tag=tag)
        return self.add(i) if add else i

    def wait_lgkm0(self, add=True):
        i = Ins('', 'wait_lgkm0')
        return self.add(i) if add else i

    def wait_vm0(self, add=True):
        i = Ins('', 'wait_vm0')
        return self.add(i) if add else i

    def barrier(self, add=True):
        i = Ins('s_barrier', 'barrier')
        return self.add(i) if add else i

    def nop(self, n=0):
        return self.add(Ins(f's_nop {n}', 'nop', ws=n + 1))

    def raw(self, text, kind='misc', wr=(), rd=()):
        return self.add(Ins(text, kind, [r for x in wr for r in _regs(x)], [r for x in rd for r in _regs(x)]))

    def label(self, name):
        return self.add(Ins(f'{name}:', 'label', ws=0))

    def branch(self, op, target):
        rd = [SCC] if 'scc' in op else (VCC.regs() if 'vcc' in op else (EXEC.regs() if 'exec' in op else []))
        return self.add(Ins(f'{op} {target}', 'branch', [], rd))

    def comment(self, t):
        return self.add(Ins(f'; {t}', 'comment', ws=0))

    def endpgm(self):
        return self.add(Ins('s_endpgm', 'end'))

    def _waits(self):
        out = []
        vmq = []
        lgq = []
        now = 0
        for i in self.ins:
            now += {'mfma': 4 * i.passes, 'comment': 0, 'label': 0}.get(i.kind, 0 if self.mfma_paced else 4)
            need_vm = None
            need_lg = None
            if i.kind in ('label', 'branch'):
                if vmq:
                    need_vm = 0
                if lgq:
                    need_lg = 0
            elif i.kind == 'wait_tag':
                idx = [k for k, e in enumerate(vmq) if e[1] == i.tag]
                if idx:
                    need_vm = len(vmq) - 1 - idx[-1]
            elif i.kind == 'wait_lgkm0':
                if lgq:
                    need_lg = 0
            elif i.kind == 'wait_vm0':
                if vmq:
                    need_vm = 0
            else:
                touched = set(i.rd) | set(i.wr)
                for k in range(len(vmq) - 1, -1, -1):
                    if vmq[k][0] & touched:
                        need_vm = len(vmq) - 1 - k
                        break
                for k in range(len(lgq) - 1, -1, -1):
                    if lgq[k][0] & touched:
                        need_lg = len(lgq) - 1 - k
                        break
                if need_lg is not None:
                    while need_lg > 0 and now - lgq[len(lgq) - need_lg][2] >= self.lds_age:
                        need_lg -= 1
                if need_lg is not None and any(e[1] for e in lgq):
                    need_lg = 0
            parts = []
            if need_vm is not None:
                need_vm = min(need_vm, 63)
                parts.append(f'vmcnt({need_vm})')
                vmq = vmq[len(vmq) - need_vm:] if need_vm else []
            if need_lg is not None:
                need_lg = min(need_lg, 15)
                parts.append(f'lgkmcnt({need_lg})')
                lgq = lgq[len(lgq) - need_lg:] if need_lg else []
            if parts:
                out.append(Ins('s_waitcnt ' + ' '.join(parts), 'wait'))
            if i.kind in ('wait_tag', 'wait_lgkm0', 'wait_vm0'):
                continue
            out.append(i)
            if i.kind in ('vm_load', 'vm_store', 'dma'):
                vmq.append((set(i.wr), i.tag))
                assert len(vmq) <= 63, f'{self.name}: more than 63 VMEM ops outstanding at {i.text}'
            elif i.kind in ('ds_read', 'ds_write'):
                lgq.append((set(i.wr), False, now))
                if len(lgq) > 15:
                    out.insert(len(out) - 1, Ins('s_waitcnt lgkmcnt(14)', 'wait'))
                    lgq = lgq[-15:]
            elif i.kind == 'smem_nowait':
                lgq.append((set(), True, now))
                lgq.append((set(), True, now))
            elif i.kind == 'smem':
                lgq.append((set(i.wr), True, now))
                if len(i.wr) > 1:
                    lgq.append((set(i.wr), True, now))
        self.ins = out

    @staticmethod
    def _need(p, c):
        n = 0
        pw, cr, cw = set(p.wr), set(c.rd), set(c.wr)
        pvalu = p.kind in ('valu', 'trans')
        cvalu = c.kind in ('valu', 'trans')
        cvmem = c.kind in ('vm_load', 'vm_store', 'dma')
        cds = c.kind in ('ds_read', 'ds_write')
        if p.kind == 'mfma':
            big = {8: 12, 4: 8}[p.passes]
            if c.kind == 'mfma':
                if pw & set(c.srcab):
                    n = max(n, big)
                if pw & set(c.srcc):
                    if not (set(c.srcc) == pw and c.passes == p.passes):
                        n = max(n, {8: 10, 4: 6}[p.passes])
                elif pw & cw:
                    n = max(n, {8: 10, 4: 6}[p.passes])
            elif cvalu or cvmem or cds:
                if pw & (cr | cw):
                    n = max(n, big)
            if cvalu and (set(p.srcc) & cw):
                n = max(n, {8: 7, 4: 3}[p.passes])
        if pvalu:
            pv = {r for r in pw if r[0] in 'va'}
            ps = {r for r in pw if r[0] == 's'}
            if c.kind == 'mfma' and pv & cr:
                n = max(n, 2)
            if cvalu:
                if c.op.startswith('v_permlane') and pv & cr:
                    n = max(n, 2)
                if c.dpp and pv & cr:
                    n = max(n, 2)
                if c.op.startswith('v_readlane') or c.op.startswith('v_readfirstlane'):
                    if pv & cr:
                        n = max(n, 1)
                    if ps & cr:
                        n = max(n, 4)
                if ps & cr:
                    n = max(n, 2)
                if p.kind == 'trans' and c.kind != 'trans' and pv & cr:
                    n = max(n, 1)
                if p.kind == 'trans' and c.kind == 'trans' and pv & cr:
                    n = max(n, 1)
            if p.kind == 'trans' and (cvmem or cds or c.kind == 'mfma') and pv & cr:
                n = max(n, 2)
            if cvmem and ps & cr:
                n = max(n, 5)
            if ps & set(EXEC.regs()):
                if c.kind == 'mfma':
                    n = max(n, 4)
                if c.dpp:
                    n = max(n, 5)
            if c.kind in ('salu', 'branch') and ps & cr:
                n = max(n, 1)
        if p.kind == 'salu' and (('s', 124) in pw) and c.kind == 'dma':
            n = max(n, 1)
        if p.kind == 'vm_store' and p.wide and set(p.wide) & cw:
            n = max(n, 2)
        return n

    def _hazards(self):
        out = []
        for i in self.ins:
            if i.kind in ('comment',):
                out.append(i)
                continue
            if i.kind == 'label':
                out.append(i)
                continue
            need = 0
            dist = 0
            for p in reversed(out):
                if dist >= 20:
                    break
                if p.kind in ('comment', 'label'):
                    continue
                r = self._need(p, i)
                if r > dist:
                    need = max(need, r - dist)
                dist += p.ws
            while need > 0:
                k = min(need, 16)
                out.append(Ins(f's_nop {k - 1}', 'nop', ws=k))
                need -= k
            out.append(i)
        self.ins = out

    def finalize(self):
        self._waits()
        self._hazards()
        for i in self.ins:
            for f, n in list(i.wr) + list(i.rd):
                if f == 'v':
                    self.maxv = max(self.maxv, n)
                elif f == 'a':
                    self.maxa = max(self.maxa, n)
                elif f == 's' and n < 102:
                    self.maxs = max(self.maxs, n)
        lines = [f'.globl {self.name}', '.p2align 8', f'.type {self.name},@function', f'{self.name}:']
        for i in self.ins:
            lines.append(i.text if i.kind == 'label' else ' ' + i.text)
        return '\n'.join(lines)

    def descriptor(self):
        acc = (self.maxv + 1 + 3) // 4 * 4
        nfv = acc + self.maxa + 1 if self.maxa >= 0 else self.maxv + 1
        assert nfv <= 512 and acc <= 256
        return f""".p2align 6
.amdhsa_kernel {self.name}
  .amdhsa_next_free_vgpr {nfv}
  .amdhsa_next_free_sgpr {max(self.maxs + 1, 16)}
  .amdhsa_accum_offset {acc}
  .amdhsa_group_segment_fixed_size 0
  .amdhsa_kernarg_size 112
  .amdhsa_user_sgpr_count 2
  .amdhsa_user_sgpr_kernarg_segment_ptr 1
  .amdhsa_system_sgpr_workgroup_id_x 1
  .amdhsa_float_denorm_mode_32 3
  .amdhsa_float_denorm_mode_16_64 3
.end_amdhsa_kernel"""

    def stats(self):
        from collections import Counter
        c = Counter(i.kind for i in self.ins)
        return dict(c)


def interleave(k, mains, fillers, per_gap):
    fi = 0
    for mi, m in enumerate(mains):
        k.add(m)
        n = per_gap(mi) if callable(per_gap) else per_gap
        for _ in range(n):
            if fi < len(fillers):
                k.add(fillers[fi])
                fi += 1
    while fi < len(fillers):
        k.add(fillers[fi])
        fi += 1
```

```python
from asmgen import *

KA = dict(x=0, k=8, v=16, wq=24, wo=32, bx=40, wg=48, wu=56, wd=64, c=72, wmod=80, out=88, dbg=96, ws=104)
SZ = dict(x=2359296, k=8388608, v=8388608, wq=4718592, wo=4718592, wg=5308416, wu=5308416, wd=5308416,
          c=1152, wmod=3981312, out=2359296, dbg=256)

import os
OPAD = int(os.environ.get('OPAD', '0'))
OTS = 262144 + OPAD
WS = dict(modp=(0x0, 3 * 3456 * 4),
          h=(0x10000, 2359296),
          o=(0x4000000, 64 * OTS),
          x1=(0x1300000, 2359296),
          h2=(0x1600000, 2359296),
          act=(0x1900000, 18874368),
          stamp=(0x3000000, 1 << 20))

LOG2E = 1.4426950408889634


def load_ptrs(k, items, tmp_base):
    for name, srd in items:
        ka = KA['ws'] if name.startswith('ws:') else KA[name]
        k.sload('s_load_dwordx2', srd.sub(0, 2), s(0, 2), ka)
    for name, srd in items:
        if name.startswith('ws:'):
            off, size = WS[name[3:]]
            if off:
                k.salu('s_add_u32', srd[0], srd[0], off)
                k.salu('s_addc_u32', srd[1], srd[1], 0)
        else:
            size = SZ[name]
        k.salu('s_mov_b32', srd[2], size)
        k.salu('s_mov_b32', srd[3], 0x20000)


import os
STAMP = int(os.environ.get('STAMP', '0'))


class Stamper:
    def __init__(self, k, base, region):
        self.k, self.base, self.n, self.region = k, base, 0, region

    def stamp(self, add=True, real=False):
        r = s(self.base + 2 * self.n, 2)
        self.n += 1
        assert self.base + 2 * self.n <= 100
        i = Ins(f"{'s_memrealtime' if real else 's_memtime'} {r}", 'smem_nowait', [], [])
        return self.k.add(i) if add else i

    def dump(self, srd, swave, vtmp0, vtmp1):
        k = self.k
        k.raw('s_waitcnt lgkmcnt(0)')
        load_ptrs(k, [('ws:stamp', srd)], 0)
        k.raw('s_waitcnt lgkmcnt(0)')
        k.salu('s_lshl_b32', s(3), s(2), 2)
        k.salu('s_add_u32', s(3), s(3), swave)
        k.salu('s_lshl_b32', s(3), s(3), 8)
        k.salu('s_add_u32', s(3), s(3), self.region * 262144)
        k.valu('v_mov_b32', vtmp0, 0)
        for i in range(self.n):
            k.valu('v_mov_b32', vtmp1, s(self.base + 2 * i))
            k.bstore('buffer_store_dword', vtmp1, vtmp0, srd, s(3), 4 * i)
            k.nop(1)
        k.maxs = max(k.maxs, self.base + 2 * self.n)
```

```python
from common import *
from sched import schedule
import os

NSLOT = 9
SLOT = 16384


def gen_attn(name='attn_kernel'):
    k = K(name)
    SH, SWQ, SK, SV, SO = s(8, 4), s(12, 4), s(16, 4), s(20, 4), s(24, 4)
    sW, sHEAD, sT0 = s(28), s(29), s(30)
    sWQB, sKVB, sHB0, sHB1, sM0B, sOB0, sOB1 = s(31), s(32), s(33), s(34), s(35), s(36), s(37)
    sTMP = [s(40 + i) for i in range(8)]
    LANE, L16 = v(0), v(1)
    VOW = [v(2 + i) for i in range(4)]
    VOK = [v(6 + i) for i in range(4)]
    VOV = v(10)
    Lsum = [v(11), v(12)]
    RL = [v(13), v(14)]
    NM = [v(15), v(16)]
    TMP = [v(17 + i) for i in range(7)]
    QT = [v(24 + i) for i in range(8)]
    NEGM = [v(32, 16), v(48, 16)]
    TRA = [[v(64 + 4 * b + t) for t in range(4)] for b in range(3)]
    KA_ = [[v(76 + 8 * b + ss) for ss in range(8)] for b in range(3)]
    ET = v(100, 28)

    def Qacc(t, T):
        return v(128 + 32 * t + 16 * T, 16)

    def S(b, sub, T):
        return v(128 + 64 * b + 32 * sub + 16 * T, 16)

    def Hfrag(m, T):
        g = m // 4
        return a(32 * (g % 6) + 8 * (m % 4) + 4 * T, 4)

    def Oacc(dt, T):
        return a(32 * dt + 16 * T, 16)

    def Qfrag(T, ss):
        return a(128 + 32 * T + 4 * ss, 4)

    def FR(f):
        return a(192 + 4 * f, 4)

    k.salu('s_cmp_ge_u32', s(2), 256)
    k.branch('s_cbranch_scc1', f'{name}_end')
    stp = Stamper(k, 48, 0)
    if STAMP:
        stp.stamp(real=True)
        stp.stamp()
    load_ptrs(k, [('ws:h', SH), ('wq', SWQ), ('k', SK), ('v', SV), ('ws:o', SO)], 0)
    k.valu('v_lshrrev_b32', v(1), 6, v(0))
    k.valu('v_readfirstlane_b32', sW, v(1))
    k.valu('v_and_b32', LANE, 63, v(0))
    k.valu('v_lshlrev_b32', L16, 4, LANE)
    t0, t1, t2 = sTMP[0], sTMP[1], sTMP[2]
    k.salu('s_and_b32', t0, s(2), 3)
    k.salu('s_lshl_b32', t0, t0, 3)
    k.salu('s_lshr_b32', t1, s(2), 3)
    k.salu('s_and_b32', t2, t1, 7)
    k.salu('s_add_u32', sHEAD, t0, t2)
    k.salu('s_lshr_b32', t0, s(2), 2)
    k.salu('s_and_b32', t0, t0, 1)
    k.salu('s_lshl_b32', t0, t0, 2)
    k.salu('s_lshr_b32', t1, t1, 3)
    k.salu('s_add_u32', t0, t0, t1)
    k.salu('s_lshl_b32', t0, t0, 3)
    k.salu('s_lshl_b32', t1, sW, 1)
    k.salu('s_add_u32', sT0, t0, t1)
    k.salu('s_lshl_b32', t0, sW, 17)
    k.salu('s_lshl_b32', t1, sHEAD, 8)
    k.salu('s_add_u32', sWQB, t0, t1)
    k.salu('s_lshr_b32', t0, sHEAD, 1)
    k.salu('s_lshl_b32', t0, t0, 19)
    k.salu('s_lshl_b32', t1, sW, 12)
    k.salu('s_add_u32', sKVB, t0, t1)
    k.salu('s_add_u32', sKVB, sKVB, 1536 * 256)
    k.salu('s_mul_i32', sHB0, sT0, 36864)
    k.salu('s_add_u32', sHB1, sHB0, 36864)
    k.salu('s_lshl_b32', sM0B, sW, 12)
    k.salu('s_mul_i32', t0, sT0, OTS)
    k.salu('s_lshl_b32', t1, sHEAD, 13)
    k.salu('s_add_u32', sOB0, t0, t1)
    k.salu('s_add_u32', sOB1, sOB0, OTS)
    q, p, x = TMP[0], TMP[1], TMP[2]
    k.valu('v_lshrrev_b32', q, 4, LANE)
    k.valu('v_and_b32', p, 15, LANE)
    k.valu('v_lshlrev_b32', x, 2, q)
    k.valu('v_xor_b32', x, p, x)
    k.valu('v_lshlrev_b32', x, 4, x)
    k.valu('v_lshl_add_u32', VOV, q, 8, x)
    k.valu('v_lshl_add_u32', VOW[0], q, 13, x)
    for j in range(1, 4):
        k.valu('v_add_u32', VOW[j], j * (4 * 8192 - 1024), VOW[0])
    for j in range(4):
        k.valu('v_add_u32', x, 4 * j, q)
        k.valu('v_xor_b32', x, p, x)
        k.valu('v_lshlrev_b32', x, 4, x)
        k.valu('v_lshl_add_u32', VOK[j], q, 8, x)

    chunks = [('W', c) for c in range(9)] + [('K', 0)]
    for t in range(1, 8):
        chunks += [('K', t), ('V', t - 1)]
    chunks += [('V', 7)]
    assert len(chunks) == 25
    pK = {t: chunks.index(('K', t)) for t in range(8)}
    pV = {t: chunks.index(('V', t)) for t in range(8)}

    def dma_chunk(ci):
        kind, idx = chunks[ci]
        slot = ci % NSLOT
        out = []
        so = sTMP[3 + (ci & 1)]
        out.append(k.salu('s_add_u32', M0, sM0B, slot * SLOT, add=False))
        if kind == 'W':
            out.append(k.salu('s_add_u32', so, sWQB, idx * 64 * 8192, add=False))
            for j in range(4):
                out.append(k.dma(VOW[j], SWQ, so, 1024 * j, tag=f'c{ci}', add=False))
        else:
            out.append(k.salu('s_add_u32', so, sKVB, idx * 16384, add=False))
            for j in range(4):
                out.append(k.dma(VOK[j] if kind == 'K' else VOV, SK if kind == 'K' else SV, so, 1024 * j,
                                 tag=f'c{ci}', add=False))
        return out

    def h_group(g):
        out = []
        for T in range(2):
            so = sTMP[5 + T]
            out.append(k.salu('s_add_u32', so, sHB1 if T else sHB0, g * 4096, add=False))
        for kk in range(4):
            for T in range(2):
                out.append(k.bload('buffer_load_dwordx4', Hfrag(4 * g + kk, T), L16, SH, sTMP[5 + T], 1024 * kk,
                                   tag=f'c{g}', add=False))
        return out

    if STAMP:
        stp.stamp()
    G0 = int(os.environ.get('G0', '2'))
    for g in range(G0):
        for i in dma_chunk(g) + h_group(g):
            k.add(i)
    if STAMP:
        stp.stamp()

    h_, r_, a1, c_, y = TMP[0], TMP[1], TMP[2], TMP[3], TMP[4]
    k.valu('v_lshrrev_b32', h_, 5, LANE)
    k.valu('v_bfe_u32', r_, LANE, 2, 2)
    k.valu('v_bfe_u32', a1, LANE, 4, 1)
    k.valu('v_lshl_add_u32', y, h_, 3, r_)
    k.valu('v_lshlrev_b32', y, 8, y)
    k.valu('v_lshl_add_u32', y, a1, 5, y)
    k.valu('v_and_b32', c_, 1, LANE)
    k.valu('v_lshl_add_u32', y, c_, 4, y)
    k.valu('v_bfe_u32', c_, LANE, 1, 1)
    k.valu('v_lshl_add_u32', y, c_, 3, y)
    for t in range(4):
        k.valu('v_xor_b32', c_, t, r_)
        k.valu('v_lshl_add_u32', TRA[0][t], c_, 6, y)
        k.valu('v_add_u32', TRA[1][t], 3 * SLOT, TRA[0][t])
        k.valu('v_add_u32', TRA[2][t], 6 * SLOT, TRA[0][t])
    key, b2, b3 = TMP[1], TMP[2], TMP[3]
    k.valu('v_and_b32', key, 0x13, LANE)
    k.valu('v_bfe_u32', b2, LANE, 2, 1)
    k.valu('v_bfe_u32', b3, LANE, 3, 1)
    k.valu('v_lshl_or_b32', key, b2, 3, key)
    k.valu('v_lshl_or_b32', key, b3, 2, key)
    k.valu('v_and_b32', b2, 15, key)
    k.valu('v_xor_b32', b2, b2, h_)
    k.valu('v_lshlrev_b32', key, 8, key)
    for ss in range(8):
        k.valu('v_xor_b32', b3, 2 * ss, b2)
        k.valu('v_lshl_add_u32', KA_[0][ss], b3, 4, key)
        k.valu('v_add_u32', KA_[1][ss], 3 * SLOT, KA_[0][ss])
        k.valu('v_add_u32', KA_[2][ss], 6 * SLOT, KA_[0][ss])
    for T in range(2):
        k.valu('v_mov_b32', Lsum[T], 0)

    if STAMP:
        stp.stamp()
        k.wait_tag('c0')
        stp.stamp()
    mains = []
    st = {'sync': [], 'frag': [], 'sm': [], 'qf': [], 'epi': [], 'stamp': []}
    BAR = 20
    AHEAD = 12
    k.mfma_paced = True

    def bar_gap(p):
        return 0 if p == 0 else 32 * (p - 1) + BAR

    issued = set(range(G0))
    for p, (kind, idx) in enumerate(chunks):
        slot = p % NSLOT
        bank, boff = slot // 3, (slot % 3) * SLOT
        g0 = 32 * p
        bg = bar_gap(p)
        st['sync'].append((k.wait_tag(f'c{p}', add=False), bg, bg))
        st['sync'].append((k.barrier(add=False), bg, bg))
        if STAMP and (p % 4 == 0 or p < 3):
            st['stamp'].append((stp.stamp(add=False), g0, g0))
        todo = []
        nx = p + G0 - (0 if p == 0 else 0)
        if nx <= 8:
            todo += dma_chunk(nx) + h_group(nx)
            issued.add(nx)
        else:
            cnt = 0
            for j in range(9, 25):
                if j not in issued and j <= p + 7 and cnt < 2:
                    todo += dma_chunk(j)
                    issued.add(j)
                    cnt += 1
        span = 30 if p else 18
        for n_, i in enumerate(todo):
            gg = bg + (n_ * span) // max(len(todo), 1)
            st['sync'].append((i, gg, gg + 1))
        for f in range(16):
            e = max(bg, g0 + 2 * f - AHEAD)
            d = max(g0 + 2 * f - 4, e)
            if kind in ('W', 'V'):
                if kind == 'W':
                    (kk, t) = (f // 4, f % 4) if idx < 8 else (f % 4, f // 4)
                else:
                    (kk, t) = (f // 4, f % 4) if idx < 7 else (f % 4, f // 4)
                for rd in range(2):
                    st['frag'].append((k.ds_read('ds_read_b64_tr_b16', FR(f).sub(2 * rd, 2), TRA[bank][t],
                                                 boff + (16 * kk + 4 * rd) * 256, add=False), e, d))
                for T in range(2):
                    if kind == 'W':
                        m = 4 * idx + kk
                        D = Qacc(t, T)
                        mains.append(k.mfma(32, D, FR(f), Hfrag(m, T), 0 if m == 0 else D, add=False))
                    else:
                        D = Oacc(t, T)
                        P = S(idx & 1, kk >> 1, T).sub(8 * (kk & 1), 4)
                        mains.append(k.mfma(32, D, FR(f), P, 0 if (idx == 0 and kk == 0) else D, add=False))
            else:
                sub, ss = f // 8, f % 8
                st['frag'].append((k.ds_read('ds_read_b128', FR(f), KA_[bank][ss], boff + sub * 32 * 256, add=False),
                                   e, d))
                for T in range(2):
                    D = S(idx & 1, sub, T)
                    C = D if ss else (0 if idx == 0 else NEGM[T])
                    mains.append(k.mfma(32, D, FR(f), Qfrag(T, ss), C, add=False))
    assert len(mains) == 800

    qi = 0
    for t in range(4):
        for T in range(2):
            e = 256 + 8 * t + 6 + T + 3
            for mp in range(2):
                ss = 2 * t + mp
                d = 288 + 2 * ss + T - 1
                if t == 0:
                    d = 287
                for j in range(4):
                    tmp = QT[qi % 8]
                    qi += 1
                    src = Qacc(t, T)
                    st['qf'].append((k.valu('v_cvt_pk_bf16_f32', tmp, src[8 * mp + 2 * j], src[8 * mp + 2 * j + 1],
                                            add=False), e, d))
                    st['qf'].append((k.valu('v_accvgpr_write_b32', Qfrag(T, ss)[j], tmp, add=False), e, d))

    for T in range(2):
        e = 288 + 14 + T + 3
        d = 320 + T - 1
        r = S(0, 0, T)
        m = TMP[T]
        seq = [k.valu('v_max3_f32', m, r[0], r[1], r[2], add=False)]
        for j in range(3, 15, 2):
            seq.append(k.valu('v_max3_f32', m, m, r[j], r[j + 1], add=False))
        seq.append(k.valu('v_max_f32', m, m, r[15], add=False))
        seq.append(k.valu('v_mov_b32', TMP[2 + T], m, add=False))
        seq.append(k.valu('v_permlane32_swap_b32', m, TMP[2 + T], add=False))
        seq.append(k.valu('v_min_f32', NM[T], neg(m), neg(TMP[2 + T]), add=False))
        for j in range(16):
            seq.append(k.valu('v_mov_b32', NEGM[T][j], NM[T], add=False))
        for i in seq:
            st['sm'].append((i, e, d))

    for t in range(8):
        for sub in range(2):
            for T in range(2):
                r = S(t & 1, sub, T)
                e = 32 * pK[t] + 16 * sub + 14 + T + 3
                for mp in range(2):
                    u = 2 * sub + mp
                    d = (32 * pV[t] + 8 * u + T - 1) if t < 7 else (32 * pV[t] + 2 * u + T - 1)
                    b = 8 * mp

                    def E(i):
                        out = []
                        if t == 0:
                            out.append(k.valu('v_add_f32', r[b + i], NM[T], r[b + i], add=False))
                        out.append(k.valu('v_exp_f32', r[b + i], r[b + i], add=False))
                        return out

                    def A(i):
                        return [k.valu('v_add_f32', Lsum[T], Lsum[T], r[b + i], add=False)]

                    def C(j):
                        return [k.valu('v_cvt_pk_bf16_f32', r[b + j], r[b + 2 * j], r[b + 2 * j + 1], add=False)]

                    seq = (E(0) + E(1) + A(0) + E(2) + A(1) + C(0) + E(3) + A(2) + E(4) + A(3) + C(1) + E(5) + A(4)
                           + E(6) + A(5) + C(2) + E(7) + A(6) + A(7) + C(3))
                    for i in seq:
                        st['sm'].append((i, e, d))
    for T in range(2):
        e = 768 + 7
        d = 800
        seq = [k.valu('v_mov_b32', TMP[T], Lsum[T], add=False),
               k.valu('v_permlane32_swap_b32', TMP[T], Lsum[T], add=False),
               k.valu('v_add_f32', Lsum[T], TMP[T], Lsum[T], add=False),
               k.valu('v_rcp_f32', RL[T], Lsum[T], add=False)]
        for i in seq:
            st['epi'].append((i, e, d))
    ei = 0
    for dt in range(4):
        for T in range(2):
            e = min(768 + 8 * dt + 6 + T + 3, 800)
            o = Oacc(dt, T)
            for mp in range(2):
                base = 12 * (ei % 2)
                ei += 1
                tm = ET.sub(base, 8)
                pk = ET.sub(base + 8, 4)
                seq = []
                for j in range(8):
                    seq.append(k.valu('v_accvgpr_read_b32', tm[j], o[8 * mp + j], add=False))
                for j in range(8):
                    seq.append(k.valu('v_mul_f32', tm[j], tm[j], RL[T], add=False))
                for j in range(4):
                    seq.append(k.valu('v_cvt_pk_bf16_f32', pk[j], tm[2 * j], tm[2 * j + 1], add=False))
                ks = 2 * dt + mp
                so = sOB1 if T else sOB0
                if ks >= 4:
                    seq.append(k.salu('s_add_u32', sTMP[7], so, 4096, add=False))
                    so = sTMP[7]
                seq.append(k.bstore('buffer_store_dwordx4', pk, L16, SO, so, 1024 * (ks % 4), 'sc1', add=False))
                for i in seq:
                    st['epi'].append((i, e, 800))

    if STAMP:
        st['stamp'].append((stp.stamp(add=False), 784, 784))
        st['stamp'].append((stp.stamp(add=False), 799, 799))
    schedule(k, mains, st, budget=24, verbose=name)
    if STAMP:
        stp.stamp()
        k.wait_vm0()
        stp.stamp()
        stp.stamp(real=True)
        stp.dump(SH, sW, v(1), v(2))
    k.label(f'{name}_end')
    k.endpgm()
    return k, (256, 256, NSLOT * SLOT)
```

```python
from common import *
from sched import schedule
import os

SLOT = 16384


def gen_gateup(name='gateup_kernel'):
    k = K(name)
    SH, SG, SU, SO = s(8, 4), s(12, 4), s(16, 4), s(20, 4)
    sW, sCB, sT0 = s(28), s(29), s(30)
    sWB, sWC, sHB0, sHB1, sM0B, sOB0, sOB1, sOC0, sOC1, sM0C = (s(31 + i) for i in range(10))
    sT = [s(41 + i) for i in range(7)]
    LANE, L16 = v(0), v(1)
    VW = [v(2), v(3)]
    VWC = v(4)
    VB = v(5)
    TR = [[v(6 + 4 * b + q) for q in range(4)] for b in range(3)]
    TRC = [v(18), v(19), v(20)]
    TMP = [v(21 + i) for i in range(11)]
    FRN = 8

    def FR(f):
        return v(32 + 4 * (f % FRN), 4)
    BX = v(64, 32)
    ACCA = v(96, 128)
    ACCX = v(224, 32)

    def BFr(s_, mt):
        i = s_ * 4 + mt
        return a(4 * i, 4) if i < 64 else BX.sub(4 * (i - 64), 4)

    accset = {0: ACCA.sub(0, 32), 1: ACCA.sub(32, 32), 2: ACCA.sub(64, 32), 3: ACCA.sub(96, 32),
              4: ACCX, 5: ACCA.sub(0, 32), 6: ACCA.sub(32, 32), 7: ACCA.sub(64, 32), 8: ACCA.sub(96, 32)}

    def acc(j, g, mt):
        return accset[j].sub(16 * g + 4 * mt, 4)

    stp = Stamper(k, 50, 3)
    k.salu('s_cmp_ge_u32', s(2), 256)
    k.branch('s_cbranch_scc1', f'{name}_end')
    if STAMP:
        stp.stamp(real=True)
        stp.stamp()
    load_ptrs(k, [('ws:h2', SH), ('wg', SG), ('wu', SU), ('ws:act', SO)], 0)
    k.valu('v_lshrrev_b32', v(1), 6, v(0))
    k.valu('v_readfirstlane_b32', sW, v(1))
    k.valu('v_and_b32', LANE, 63, v(0))
    k.valu('v_lshlrev_b32', L16, 4, LANE)
    t0, t1, t2 = sT[0], sT[1], sT[2]
    k.salu('s_and_b32', t0, s(2), 7)
    k.salu('s_lshl_b32', t0, t0, 2)
    k.salu('s_lshr_b32', t1, s(2), 3)
    k.salu('s_and_b32', t2, t1, 3)
    k.salu('s_add_u32', sCB, t0, t2)
    k.salu('s_lshr_b32', t1, t1, 2)
    k.salu('s_lshl_b32', t1, t1, 3)
    k.salu('s_lshl_b32', t0, sW, 1)
    k.salu('s_add_u32', sT0, t1, t0)
    k.salu('s_and_b32', t0, sW, 1)
    k.salu('s_mul_i32', sWB, t0, 32 * 9216)
    k.salu('s_lshl_b32', t1, sCB, 8)
    k.salu('s_add_u32', sWB, sWB, t1)
    k.salu('s_lshl_b32', sM0B, sW, 12)
    SWM = s(24, 4)
    k.salu('s_cmp_lt_u32', sW, 2)
    k.salu('s_cselect_b32', SWM[0], SG[0], SU[0])
    k.salu('s_cselect_b32', SWM[1], SG[1], SU[1])
    k.salu('s_mov_b32', SWM[2], SZ['wg'])
    k.salu('s_mov_b32', SWM[3], 0x20000)
    k.salu('s_mul_i32', sWC, t0, 64 * 9216)
    k.salu('s_lshl_b32', t1, sCB, 5)
    k.salu('s_add_u32', sWC, sWC, t1)
    k.salu('s_add_u32', sWC, sWC, 8192)
    k.salu('s_lshl_b32', sM0C, sW, 11)
    k.salu('s_mul_i32', sHB0, sT0, 36864)
    k.salu('s_add_u32', sHB1, sHB0, 36864)
    k.salu('s_mul_i32', t0, sT0, 288 * 1024)
    k.salu('s_lshl_b32', t1, sCB, 13)
    k.salu('s_add_u32', sOB0, t0, t1)
    k.salu('s_add_u32', sOB1, sOB0, 288 * 1024)
    k.salu('s_lshl_b32', t1, sCB, 10)
    k.salu('s_add_u32', sOC0, t0, t1)
    k.salu('s_add_u32', sOC0, sOC0, 256 * 1024)
    k.salu('s_add_u32', sOC1, sOC0, 288 * 1024)
    x0, x1, x2 = TMP[0], TMP[1], TMP[2]
    k.valu('v_lshrrev_b32', x0, 5, LANE)
    k.valu('v_lshlrev_b32', VB, 10, x0)
    k.valu('v_bfe_u32', x0, LANE, 4, 1)
    k.valu('v_lshl_add_u32', VB, x0, 9, VB)
    k.valu('v_and_b32', x1, 15, LANE)
    k.valu('v_lshl_add_u32', VB, x1, 4, VB)
    k.valu('v_lshrrev_b32', x0, 3, LANE)
    k.salu('s_movk_i32', t0, 9216)
    k.valu('v_mul_lo_u32', x0, x0, t0)
    k.valu('v_bfe_u32', x1, LANE, 1, 2)
    k.valu('v_bfe_u32', x2, LANE, 4, 1)
    k.valu('v_xor_b32', x1, x1, x2)
    for j in range(2):
        k.valu('v_xor_b32', x2, 2 * j, x1)
        k.valu('v_lshl_add_u32', VW[j], x2, 5, x0)
        k.valu('v_and_b32', x2, 1, LANE)
        k.valu('v_lshl_add_u32', VW[j], x2, 4, VW[j])
    k.valu('v_add_u32', VW[1], 8 * 9216 - 1024, VW[1])
    k.valu('v_lshrrev_b32', x0, 1, LANE)
    k.valu('v_and_b32', x1, 0x13, x0)
    k.valu('v_bfe_u32', x2, x0, 2, 1)
    k.valu('v_lshl_or_b32', x1, x2, 3, x1)
    k.valu('v_bfe_u32', x2, x0, 3, 1)
    k.valu('v_lshl_or_b32', x1, x2, 2, x1)
    k.valu('v_mul_lo_u32', x1, x1, t0)
    k.valu('v_and_b32', x2, 1, LANE)
    k.valu('v_lshl_add_u32', VWC, x2, 4, x1)

    def dma_chunk(pas, c):
        out = [k.salu('s_add_u32', M0, sM0B, c * SLOT, add=False),
               k.salu('s_add_u32', sT[3], sWB, c * 64 * 9216 + pas * 128, add=False),
               k.salu('s_add_u32', sT[4], sWB, c * 64 * 9216 + pas * 128 + 16 * 9216 - 2048, add=False)]
        for j in range(4):
            out.append(k.dma(VW[j & 1], SWM, sT[3 + (j >> 1)], 1024 * j, tag=f'w{pas}_{c}', add=False))
        return out

    def dma_chunkC(c):
        out = [k.salu('s_add_u32', M0, sM0C, c * SLOT, add=False)]
        for j in range(2):
            out.append(k.salu('s_add_u32', sT[3], sWC, c * 128 * 9216 + j * (32 * 9216 - 1024), add=False))
            out.append(k.dma(VWC, SWM, sT[3], 1024 * j, tag=f'w2_{c}', add=False))
        return out

    def h_group(c):
        out = [k.salu('s_add_u32', sT[5], sHB0, c * 4096, add=False),
               k.salu('s_add_u32', sT[6], sHB1, c * 4096, add=False)]
        for ss in range(2):
            for mt in range(4):
                out.append(k.bload('buffer_load_dwordx4', BFr(2 * c + ss, mt), VB, SH, sT[5 + (mt >> 1)],
                                   2048 * ss + 256 * (mt & 1), tag=f'w0_{c}', add=False))
        return out

    G0 = 2
    for c in range(G0):
        for i in dma_chunk(0, c) + h_group(c):
            k.add(i)
    if STAMP:
        stp.stamp()
    kq, r_, y = TMP[0], TMP[1], TMP[2]
    k.valu('v_lshrrev_b32', kq, 4, LANE)
    k.valu('v_bfe_u32', r_, LANE, 2, 2)
    k.valu('v_lshl_add_u32', y, kq, 3, r_)
    k.valu('v_lshlrev_b32', y, 7, y)
    k.valu('v_and_b32', TMP[3], 3, LANE)
    k.valu('v_lshl_add_u32', y, TMP[3], 3, y)
    k.valu('v_bfe_u32', TMP[4], LANE, 3, 1)
    k.valu('v_bfe_u32', TMP[5], LANE, 4, 1)
    k.valu('v_lshl_or_b32', TMP[4], TMP[5], 1, TMP[4])
    for q in range(4):
        k.valu('v_xor_b32', TMP[5], q, TMP[4])
        k.valu('v_lshl_add_u32', TR[0][q], TMP[5], 5, y)
        k.valu('v_add_u32', TR[1][q], 3 * SLOT, TR[0][q])
        k.valu('v_add_u32', TR[2][q], 6 * SLOT, TR[0][q])
    k.valu('v_lshrrev_b32', y, 5, LANE)
    k.valu('v_lshlrev_b32', y, 4, y)
    k.valu('v_bfe_u32', TMP[5], LANE, 4, 1)
    k.valu('v_lshl_add_u32', y, TMP[5], 2, y)
    k.valu('v_add_u32', y, y, r_)
    k.valu('v_lshlrev_b32', y, 5, y)
    k.valu('v_lshl_add_u32', TRC[0], TMP[3], 3, y)
    k.valu('v_add_u32', TRC[1], 3 * SLOT, TRC[0])

    k.mfma_paced = True
    k.lds_age = 128
    mains = []
    st = {'sync': [], 'frag': [], 'epi': [], 'stamp': []}
    AHEAD = 20
    fcount = [0]
    frag_last_use = {}

    def add_frag(reads_fn, users, min_gap):
        f = fcount[0]
        fcount[0] += 1
        g0 = len(mains)
        e = max(min_gap, g0 - AHEAD, frag_last_use.get(f % FRN, -1) + 1)
        d = max(g0 - 6, e)
        for i in reads_fn(FR(f)):
            st['frag'].append((i, e, d))
        for u in users:
            mains.append(u(FR(f)))
        frag_last_use[f % FRN] = len(mains) - 1

    def rdAB(c, ss, g, q):
        bank, boff = c // 3, (c % 3) * SLOT
        return lambda fr: [k.ds_read('ds_read_b64_tr_b16', fr.sub(2 * rd, 2), TR[bank][q],
                                     boff + g * 8192 + ss * 4096 + rd * 512, add=False) for rd in range(2)]

    def rdC(s_, g):
        c, ss = s_ // 4, s_ % 4
        bank, boff = c // 3, (c % 3) * SLOT
        return lambda fr: [k.ds_read('ds_read_b64_tr_b16', fr.sub(2 * rd, 2), TRC[bank],
                                     boff + g * 4096 + ss * 1024 + rd * 256, add=False) for rd in range(2)]

    def users(j, g, s_):
        def mk(mt):
            d = acc(j, g, mt)
            return lambda fr: k.mfma(16, d, fr, BFr(s_, mt), 0 if s_ == 0 else d, add=False)
        return [mk(mt) for mt in range(4)]

    def sync(gap, tag, todo, span):
        if tag:
            st['sync'].append((k.wait_tag(tag, add=False), gap, gap))
        st['sync'].append((k.barrier(add=False), gap, gap))
        for n_, i in enumerate(todo):
            gg = gap + (n_ * span) // max(len(todo), 1)
            st['sync'].append((i, gg, gg + 2))

    tile_done = {}
    for c in range(9):
        bg = 0 if c == 0 else 64 * (c - 1) + 40
        todo = []
        if c + G0 <= 8:
            todo += dma_chunk(0, c + G0) + h_group(c + G0)
        else:
            pass
        if c >= 7:
            for cc in ([0, 1, 2] if c == 7 else [3, 4, 5, 6]):
                todo += dma_chunk(1, cc)
        sync(bg, f'w0_{c}', todo, 60 if c else 36)
        if STAMP and c % 3 == 0:
            st['stamp'].append((stp.stamp(add=False), 64 * c, 64 * c))
        for ss in range(2):
            for q in range(4):
                for g in range(2):
                    add_frag(rdAB(c, ss, g, q), users(q, g, 2 * c + ss), bg)
    for q in range(4):
        tile_done[q] = len(mains) - 1 - 8 * (3 - q)
    baseB = len(mains)
    for j in range(4, 8):
        if STAMP:
            st['stamp'].append((stp.stamp(add=False), len(mains), len(mains)))
        for c in range(9):
            g0 = len(mains)
            bg = 0
            if j == 4:
                bg = g0 - 14
                todo = []
                if c == 1:
                    todo = dma_chunk(1, 7) + dma_chunk(1, 8)
                sync(bg, f'w1_{c}', todo, 12)
            if j == 7 and c in (3, 5):
                todo = []
                for cc in ([0, 1, 2] if c == 3 else [3, 4]):
                    todo += dma_chunkC(cc)
                sync(g0 + 2, None, todo, 24)
            for ss in range(2):
                for g in range(2):
                    add_frag(rdAB(c, ss, g, j - 4), users(j, g, 2 * c + ss), bg)
        tile_done[j] = len(mains) - 1
    if STAMP:
        st['stamp'].append((stp.stamp(add=False), len(mains), len(mains)))
    for s_ in range(18):
        g0 = len(mains)
        bg = 0
        if s_ % 4 == 0:
            bg = g0 - 10
            todo = []
            sync(bg, f'w2_{s_ // 4}', todo, 6)
        else:
            bg = g0 - 8 * (s_ % 4) - 10
        for g in range(2):
            add_frag(rdC(s_, g), users(8, g, s_), bg)
    tile_done[8] = len(mains) - 1
    NM = len(mains)
    assert NM == 1296

    first_write = {5: baseB + 144, 6: baseB + 288, 7: baseB + 432, 8: baseB + 576}
    reuse_deadline = {0: first_write[5] - 1, 1: first_write[6] - 1, 2: first_write[7] - 1, 3: first_write[8] - 1}
    ti = 0
    for j in range(9):
        e = min(tile_done[j] + 4, NM)
        d = reuse_deadline.get(j, NM)
        for T in range(2):
            seq = []
            pk = [None, None]
            for a_ in range(2):
                mt = 2 * T + a_
                gq, uq = acc(j, 0, mt), acc(j, 1, mt)
                tm = [TMP[(4 * ti + r) % 8] for r in range(4)]
                ti += 1
                for r in range(4):
                    seq.append(k.valu('v_mul_f32', tm[r], -LOG2E, gq[r], add=False))
                for r in range(4):
                    seq.append(k.valu('v_exp_f32', tm[r], tm[r], add=False))
                for r in range(4):
                    seq.append(k.valu('v_mul_f32', gq[r], gq[r], uq[r], add=False))
                for r in range(4):
                    seq.append(k.valu('v_add_f32', tm[r], 1.0, tm[r], add=False))
                for r in range(4):
                    seq.append(k.valu('v_rcp_f32', tm[r], tm[r], add=False))
                for r in range(4):
                    seq.append(k.valu('v_mul_f32', gq[r], gq[r], tm[r], add=False))
            o = acc(j, 1, 2 * T)
            gx, gy = acc(j, 0, 2 * T), acc(j, 0, 2 * T + 1)
            seq.append(k.valu('v_cvt_pk_bf16_f32', o[0], gx[0], gx[1], add=False))
            seq.append(k.valu('v_cvt_pk_bf16_f32', o[1], gx[2], gx[3], add=False))
            seq.append(k.valu('v_cvt_pk_bf16_f32', o[2], gy[0], gy[1], add=False))
            seq.append(k.valu('v_cvt_pk_bf16_f32', o[3], gy[2], gy[3], add=False))
            seq.append(k.valu('v_permlane16_swap_b32', o[0], o[2], add=False))
            seq.append(k.valu('v_permlane16_swap_b32', o[1], o[3], add=False))
            if j < 8:
                so = sOB1 if T else sOB0
                if j >= 4:
                    seq.append(k.salu('s_add_u32', sT[2], so, 4096, add=False))
                    so = sT[2]
                seq.append(k.bstore('buffer_store_dwordx4', o, L16, SO, so, 1024 * (j % 4), 'sc1', add=False))
            else:
                seq.append(k.bstore('buffer_store_dwordx4', o, L16, SO, sOC1 if T else sOC0, 0, 'sc1', add=False))
            for i in seq:
                st['epi'].append((i, e, d))

    schedule(k, mains, st, budget=8, verbose=name)
    if STAMP:
        stp.stamp()
        k.wait_vm0()
        stp.stamp()
        stp.stamp(real=True)
        stp.dump(SH, sW, v(1), v(2))
    k.label(f'{name}_end')
    k.endpgm()
    return k, (256, 256, 9 * SLOT)
```

```python
from common import *
import os

NWG = 234


def gen_proj(name, which):
    KTOT = 4096 if which == 0 else 4608
    NK16 = KTOT // 16
    NS = KTOT // 4 // 32
    D = int(os.environ.get('PD', '4'))
    RING = D + 1
    WSLOT = 4096
    WREG = 20480
    assert RING * WSLOT <= WREG
    k = K(name)
    SA, SWt, SM, SX, SO = s(8, 4), s(12, 4), s(16, 4), s(20, 4), s(24, 4)
    sW, sMT, sNT = s(28), s(29), s(30)
    sAB = [s(32 + i) for i in range(5)]
    sWB, sM0B = s(38), s(39)
    t0, t1, t2, t3 = s(40), s(41), s(42), s(43)
    sSO = [s(44), s(45)]
    LANE = v(0)
    VB = v(1)
    VW = [v(2), v(3)]
    TR = [v(4 + i) for i in range(4)]
    L16 = v(8)
    VX = v(9)
    VO = v(10)
    TMP = [v(12 + i) for i in range(8)]
    G = v(20, 4)
    GP = v(24, 12)
    XR = v(36, 10)
    AF = [v(48 + 16 * b, 16) for b in range(2)]
    ACC = v(80, 80)
    RT = v(160, 60)

    def BF(slot, mt):
        return a(20 * slot + 4 * mt, 4)

    def acc(mt, nt):
        return ACC.sub(16 * mt + 4 * nt, 4)

    stp = Stamper(k, 48, 1 + which)
    k.salu('s_cmp_ge_u32', s(2), NWG)
    k.branch('s_cbranch_scc1', f'{name}_end')
    if STAMP:
        stp.stamp(real=True)
        stp.stamp()
    if which == 0:
        load_ptrs(k, [('ws:o', SA), ('wo', SWt), ('ws:modp', SM), ('x', SX), ('ws:x1', SO)], 0)
    else:
        load_ptrs(k, [('ws:act', SA), ('wd', SWt), ('ws:modp', SM), ('ws:x1', SX), ('out', SO)], 0)
    k.valu('v_lshrrev_b32', v(1), 6, v(0))
    k.valu('v_readfirstlane_b32', sW, v(1))
    k.valu('v_and_b32', LANE, 63, v(0))
    k.valu('v_lshlrev_b32', L16, 4, LANE)
    k.salu('s_and_b32', t0, s(2), 7)
    k.salu('s_mul_i32', t1, t0, 29)
    k.salu('s_min_u32', t0, t0, 2)
    k.salu('s_add_u32', t1, t1, t0)
    k.salu('s_lshr_b32', t0, s(2), 3)
    k.salu('s_add_u32', t1, t1, t0)
    k.salu('s_mul_i32', sMT, t1, 7282)
    k.salu('s_lshr_b32', sMT, sMT, 16)
    k.salu('s_mul_i32', t0, sMT, 9)
    k.salu('s_sub_u32', sNT, t1, t0)
    k.salu('s_mul_i32', t2, sW, (NK16 // 4) * 1024)
    k.salu('s_mul_i32', t3, sMT, 5)
    for i in range(5):
        k.salu('s_add_u32', t0, t3, i)
        k.salu('s_lshr_b32', t1, t0, 1)
        k.salu('s_mul_i32', t1, t1, OTS if which == 0 else NK16 * 1024)
        k.salu('s_and_b32', t0, t0, 1)
        k.salu('s_lshl_b32', t0, t0, 8)
        k.salu('s_add_u32', t1, t1, t0)
        k.salu('s_add_u32', sAB[i], t1, t2)
    k.salu('s_mul_i32', sWB, sW, (KTOT // 4) * 1152)
    k.salu('s_lshl_b32', t0, sNT, 7)
    k.salu('s_add_u32', sWB, sWB, t0)
    k.salu('s_mul_i32', sM0B, sW, WREG)
    x0, x1, x2 = TMP[0], TMP[1], TMP[2]
    k.valu('v_lshrrev_b32', x0, 5, LANE)
    k.valu('v_lshlrev_b32', VB, 10, x0)
    k.valu('v_bfe_u32', x0, LANE, 4, 1)
    k.valu('v_lshl_add_u32', VB, x0, 9, VB)
    k.valu('v_and_b32', x1, 15, LANE)
    k.valu('v_lshl_add_u32', VB, x1, 4, VB)
    k.valu('v_lshrrev_b32', x0, 3, LANE)
    k.salu('s_movk_i32', t0, 1152)
    k.valu('v_mul_lo_u32', x0, x0, t0)
    k.valu('v_bfe_u32', x1, LANE, 1, 2)
    k.valu('v_bfe_u32', x2, LANE, 4, 1)
    k.valu('v_xor_b32', x1, x1, x2)
    for j in range(2):
        k.valu('v_xor_b32', x2, 2 * j, x1)
        k.valu('v_lshl_add_u32', VW[j], x2, 5, x0)
        k.valu('v_and_b32', x2, 1, LANE)
        k.valu('v_lshl_add_u32', VW[j], x2, 4, VW[j])
    if True:
        k.valu('v_add_u32', VW[1], 8 * 1152 - 1024, VW[1])

    def issue(st_):
        slot = st_ % RING
        out = []
        out.append(k.salu('s_add_u32', M0, sM0B, slot * WSLOT, add=False))
        out.append(k.salu('s_add_u32', sSO[0], sWB, st_ * 32 * 1152, add=False))
        out.append(k.salu('s_add_u32', sSO[1], sWB, st_ * 32 * 1152 + 16 * 1152 - 2048, add=False))
        for j in range(4):
            out.append(k.dma(VW[j & 1], SWt, sSO[j >> 1], 1024 * j, tag=f'w{st_}', add=False))
        for mt in range(5):
            out.append(k.bload('buffer_load_dwordx4', BF(slot, mt), VB, SA, sAB[mt], 2048 * (st_ & 1), tag=f'w{st_}',
                               add=False))
            if st_ & 1:
                out.append(k.salu('s_add_u32', sAB[mt], sAB[mt], 4096, add=False))
        return out

    for st_ in range(D):
        for i in issue(st_):
            k.add(i)
    if STAMP:
        stp.stamp()
    kq, r_, y = TMP[0], TMP[1], TMP[2]
    k.valu('v_lshrrev_b32', kq, 4, LANE)
    k.valu('v_bfe_u32', r_, LANE, 2, 2)
    k.valu('v_lshl_add_u32', y, kq, 3, r_)
    k.valu('v_lshlrev_b32', y, 7, y)
    k.valu('v_and_b32', TMP[3], 3, LANE)
    k.valu('v_lshl_add_u32', y, TMP[3], 3, y)
    k.valu('v_add_u32', y, sM0B, y)
    k.valu('v_bfe_u32', TMP[3], LANE, 3, 1)
    k.valu('v_bfe_u32', TMP[4], LANE, 4, 1)
    k.valu('v_lshl_or_b32', TMP[3], TMP[4], 1, TMP[3])
    for q in range(4):
        k.valu('v_xor_b32', TMP[4], q, TMP[3])
        k.valu('v_lshl_add_u32', TR[q], TMP[4], 5, y)
    rq = TMP[0]
    gi = 2 if which == 0 else 5
    k.valu('v_lshlrev_b32', TMP[5], 4, rq)
    k.salu('s_lshl_b32', t0, sNT, 8)
    k.salu('s_lshl_b32', t1, sW, 6)
    k.salu('s_add_u32', t0, t0, t1)
    for p in range(3):
        k.salu('s_add_u32', t1, t0, (p * 3456 + gi * 576) * 4)
        k.bload('buffer_load_dwordx4', GP.sub(4 * p, 4), TMP[5], SM, t1, 0)
    tok = TMP[1]
    k.valu('v_and_b32', tok, 15, LANE)
    rm, fr = TMP[6], TMP[7]
    k.salu('s_movk_i32', t1, 1152)
    k.valu('v_mul_lo_u32', rm, tok, t1)
    k.valu('v_lshl_add_u32', rm, rq, 3, rm)
    k.valu('v_lshrrev_b32', fr, 5, LANE)
    k.valu('v_lshlrev_b32', fr, 9, fr)
    k.valu('v_lshl_add_u32', fr, tok, 4, fr)
    k.valu('v_bfe_u32', TMP[2], LANE, 4, 1)
    k.valu('v_lshl_add_u32', fr, TMP[2], 3, fr)
    k.valu('v_mov_b32', VX, rm if which == 0 else fr)
    k.valu('v_mov_b32', VO, fr if which == 0 else rm)
    sRM = [s(86 + i) for i in range(5)]
    sFR = [s(92 + i) for i in range(5)]
    k.salu('s_lshr_b32', t0, t0, 1)
    k.salu('s_lshl_b32', t2, sNT, 2)
    k.salu('s_add_u32', t2, t2, sW)
    k.salu('s_lshl_b32', t2, t2, 10)
    for i in range(5):
        k.salu('s_add_u32', t1, t3, i)
        k.salu('s_mul_i32', sRM[i], t1, 16 * 1152)
        k.salu('s_add_u32', sRM[i], sRM[i], t0)
        k.salu('s_lshr_b32', sFR[i], t1, 1)
        k.salu('s_mul_i32', sFR[i], sFR[i], 36864)
        k.salu('s_and_b32', t1, t1, 1)
        k.salu('s_lshl_b32', t1, t1, 8)
        k.salu('s_add_u32', sFR[i], sFR[i], t1)
        k.salu('s_add_u32', sFR[i], sFR[i], t2)
    sXo, sOo = (sRM, sFR) if which == 0 else (sFR, sRM)
    for i in range(5):
        k.bload('buffer_load_dwordx2', XR.sub(2 * i, 2), VX, SX, sXo[i], 0)

    k.mfma_paced = True
    k.lds_age = 128

    def reads(st_):
        slot = st_ % RING
        out = []
        for q in range(4):
            for rd in range(2):
                out.append(k.ds_read('ds_read_b64_tr_b16', AF[st_ & 1].sub(4 * q + 2 * rd, 2), TR[q],
                                     slot * WSLOT + rd * 512, add=False))
        return out

    k.wait_tag('w0')
    if STAMP:
        stp.stamp()
    for i in reads(0):
        k.add(i)
    for st_ in range(NS):
        fill = []
        if st_ + D < NS:
            fill += issue(st_ + D)
        mid = []
        if st_ + 1 < NS:
            mid = [k.wait_tag(f'w{st_ + 1}', add=False)] + reads(st_ + 1)
        ms = []
        for nt in range(4):
            for mt in range(5):
                d = acc(mt, nt)
                ms.append(k.mfma(16, d, AF[st_ & 1].sub(4 * nt, 4), BF(st_ % RING, mt), 0 if st_ == 0 else d, add=False))
        fi = 0
        for i, m in enumerate(ms):
            k.add(m)
            if i < 10:
                for _ in range(2):
                    if fi < len(fill):
                        k.add(fill[fi])
                        fi += 1
            elif i == 10:
                while fi < len(fill):
                    k.add(fill[fi])
                    fi += 1
            if i >= 10 and (i - 10) < len(mid):
                k.add(mid[i - 10])
        if STAMP and st_ % 4 == 3:
            stp.stamp()
    k.mfma_paced = False
    k.wait_lgkm0()
    k.barrier()
    k.salu('s_mul_i32', t0, sW, 5 * 1024)
    k.valu('v_add_u32', TMP[0], t0, L16)
    for nt in range(4):
        for mt in range(5):
            off = nt * WREG + mt * 1024
            if off >= 65536 - 16:
                if mt == 0 or (nt * WREG + (mt - 1) * 1024) < 65536 - 16:
                    k.valu('v_add_u32', TMP[1], 32768, TMP[0])
                k.ds_write('ds_write_b128', TMP[1], acc(mt, nt), off - 32768)
            else:
                k.ds_write('ds_write_b128', TMP[0], acc(mt, nt), off)
    for j in range(4):
        k.valu('v_add_f32', G[j], GP[j], GP[4 + j])
        k.valu('v_add_f32', G[j], G[j], GP[8 + j])
        k.valu('v_cvt_pk_bf16_f32', G[j], G[j], G[j])
        k.valu('v_and_b32', G[j], 0xffff0000, G[j])
    k.wait_lgkm0()
    k.barrier()
    k.valu('v_add_u32', TMP[0], sM0B, L16)
    R4 = [ACC.sub(16 * mt, 16) for mt in range(5)]
    for mt in range(5):
        for src in range(4):
            k.ds_read('ds_read_b128', R4[mt].sub(4 * src, 4), TMP[0], (src * 5 + mt) * 1024)
    for mt in range(5):
        r = R4[mt]
        o = RT.sub(8 * mt, 8)
        for j in range(4):
            k.valu('v_add_f32', r[j], r[j], r[4 + j])
            k.valu('v_add_f32', r[8 + j], r[8 + j], r[12 + j])
        for j in range(4):
            k.valu('v_add_f32', r[j], r[j], r[8 + j])
        k.valu('v_cvt_pk_bf16_f32', o[0], r[0], r[1])
        k.valu('v_cvt_pk_bf16_f32', o[1], r[2], r[3])
        for j in range(4):
            if j & 1:
                k.valu('v_and_b32', r[j], 0xffff0000, o[j >> 1])
            else:
                k.valu('v_lshlrev_b32', r[j], 16, o[j >> 1])
            k.valu('v_mul_f32', r[j], r[j], G[j])
        k.valu('v_cvt_pk_bf16_f32', o[0], r[0], r[1])
        k.valu('v_cvt_pk_bf16_f32', o[1], r[2], r[3])
        for j in range(4):
            xr = XR[2 * mt + (j >> 1)]
            if j & 1:
                k.valu('v_and_b32', r[j], 0xffff0000, o[j >> 1])
                k.valu('v_and_b32', r[4 + j], 0xffff0000, xr)
            else:
                k.valu('v_lshlrev_b32', r[j], 16, o[j >> 1])
                k.valu('v_lshlrev_b32', r[4 + j], 16, xr)
            k.valu('v_add_f32', r[j], r[j], r[4 + j])
        k.valu('v_cvt_pk_bf16_f32', o[2], r[0], r[1])
        k.valu('v_cvt_pk_bf16_f32', o[3], r[2], r[3])
        k.bstore('buffer_store_dwordx2', o.sub(2, 2), VO, SO, sOo[mt], 0, 'sc1')
    if STAMP:
        stp.stamp()
        k.wait_vm0()
        stp.stamp()
        stp.stamp(real=True)
        stp.dump(SA, sW, v(1), v(2))
    k.label(f'{name}_end')
    k.endpgm()
    return k, (NWG, 256, 4 * WREG)
```

```python
from common import *


def gen_mod(name='mod_kernel'):
    k = K(name)
    SW, SC, SO = s(8, 4), s(12, 4), s(16, 4)
    k.salu('s_cmp_ge_u32', s(2), 162)
    k.branch('s_cbranch_scc1', f'{name}_end')
    load_ptrs(k, [('wmod', SW), ('c', SC), ('ws:modp', SO)], 0)
    k.salu('s_mov_b32', s(3), 0x55555556)
    k.salu('s_mul_hi_u32', s(4), s(2), s(3))
    k.salu('s_mul_i32', s(5), s(4), 3)
    k.salu('s_sub_u32', s(5), s(2), s(5))
    k.salu('s_mul_i32', s(6), s(5), 192)
    k.valu('v_and_b32', v(1), 7, v(0))
    k.valu('v_lshrrev_b32', v(2), 3, v(0))
    k.valu('v_add_u32', v(3), s(6), v(2))
    k.valu('v_lshlrev_b32', v(4), 1, v(3))
    k.salu('s_mov_b32', s(7), 6912)
    k.valu('v_mul_lo_u32', v(5), v(3), s(7))
    k.valu('v_lshl_add_u32', v(5), v(1), 4, v(5))
    k.salu('s_lshl_b32', s(20), s(4), 7)
    for i in range(6):
        k.bload('buffer_load_ushort', v(8 + i), v(4), SC, 0, 64 * i)
    for i in range(6):
        k.bload('buffer_load_dwordx4', v(16 + 4 * i, 4), v(5), SW, s(20))
        if i < 5:
            k.salu('s_add_u32', s(20), s(20), 32 * 6912)
    for i in range(6):
        x = v(8 + i)
        k.valu('v_lshlrev_b32', x, 16, x)
        k.valu('v_mul_f32', v(40), -LOG2E, x)
        k.valu('v_exp_f32', v(40), v(40))
        k.valu('v_add_f32', v(40), 1.0, v(40))
        k.valu('v_rcp_f32', v(40), v(40))
        k.valu('v_mul_f32', x, x, v(40))
        k.valu('v_cvt_pk_bf16_f32', x, x, x)
        k.valu('v_and_b32', x, 0xffff0000, x)
    acc = v(44, 8)
    for i in range(6):
        for j in range(4):
            w = v(16 + 4 * i + j)
            k.valu('v_lshlrev_b32', v(41), 16, w)
            k.valu('v_and_b32', v(42), 0xffff0000, w)
            if i == 0:
                k.valu('v_mul_f32', acc[2 * j], v(8 + i), v(41))
                k.valu('v_mul_f32', acc[2 * j + 1], v(8 + i), v(42))
            else:
                k.valu('v_fmac_f32', acc[2 * j], v(8 + i), v(41))
                k.valu('v_fmac_f32', acc[2 * j + 1], v(8 + i), v(42))
    k.valu('v_lshlrev_b32', v(6), 8, v(2))
    k.valu('v_lshl_add_u32', v(6), v(1), 5, v(6))
    k.ds_write('ds_write_b128', v(6), acc.sub(0, 4), 0)
    k.ds_write('ds_write_b128', v(6), acc.sub(4, 4), 16)
    k.wait_lgkm0()
    k.barrier()
    k.valu('v_and_b32', v(1), 63, v(0))
    k.valu('v_lshrrev_b32', v(2), 6, v(0))
    k.valu('v_lshlrev_b32', v(6), 11, v(2))
    k.valu('v_lshl_add_u32', v(6), v(1), 2, v(6))
    for i in range(8):
        k.ds_read('ds_read_b32', v(16 + i), v(6), 256 * i)
    for i in range(1, 8):
        k.valu('v_add_f32', v(16), v(16), v(16 + i))
    k.valu('v_lshlrev_b32', v(7), 2, v(0))
    k.ds_write('ds_write_b32', v(7), v(16), 8192)
    k.wait_lgkm0()
    k.barrier()
    k.valu('v_readfirstlane_b32', s(21), v(2))
    k.salu('s_cmp_lg_u32', s(21), 0)
    k.branch('s_cbranch_scc1', f'{name}_end')
    for i in range(4):
        k.ds_read('ds_read_b32', v(16 + i), v(7), 8192 + 256 * i)
    k.valu('v_add_f32', v(16), v(16), v(17))
    k.valu('v_add_f32', v(18), v(18), v(19))
    k.valu('v_add_f32', v(16), v(16), v(18))
    k.salu('s_mul_i32', s(22), s(5), 3456 * 4)
    k.salu('s_lshl_b32', s(23), s(4), 8)
    k.salu('s_add_u32', s(22), s(22), s(23))
    k.bstore('buffer_store_dword', v(16), v(7), SO, s(22), 0, 'sc1')
    k.label(f'{name}_end')
    k.endpgm()
    return k, (162, 256, 9216)


def gen_ln(name, src, dst, ishift, iscale, outscale=None, src_frag=False):
    k = K(name)
    SX, SM, SO = s(8, 4), s(12, 4), s(16, 4)
    k.salu('s_cmp_ge_u32', s(2), 64)
    k.branch('s_cbranch_scc1', f'{name}_end')
    load_ptrs(k, [(src, SX), ('ws:modp', SM), (dst, SO)], 0)
    k.valu('v_and_b32', v(1), 7, v(0))
    k.valu('v_lshrrev_b32', v(2), 3, v(0))
    k.salu('s_lshl_b32', s(3), s(2), 5)
    k.valu('v_add_u32', v(3), s(3), v(2))
    k.salu('s_movk_i32', s(4), 1152)
    k.valu('v_mul_lo_u32', v(3), v(3), s(4))
    k.valu('v_lshl_add_u32', v(3), v(1), 4, v(3))
    X = v(100, 36)
    if src_frag:
        k.valu('v_lshrrev_b32', v(3), 1, v(1))
        k.valu('v_lshlrev_b32', v(3), 10, v(3))
        k.valu('v_and_b32', v(27), 1, v(1))
        k.valu('v_lshl_add_u32', v(27), v(27), 5, v(2))
        k.valu('v_lshl_add_u32', v(3), v(27), 4, v(3))
        k.salu('s_mul_i32', s(6), s(2), 36864)
        for i in range(9):
            k.bload('buffer_load_dwordx4', X.sub(4 * i, 4), v(3), SX, s(6), 0)
            k.salu('s_add_u32', s(6), s(6), 4096)
    else:
        for i in range(9):
            k.bload('buffer_load_dwordx4', X.sub(4 * i, 4), v(3), SX, 0, 128 * i)
    k.valu('v_lshlrev_b32', v(4), 2, v(0))
    T = v(8, 18)
    for which, idx in ((0, iscale), (1, ishift)):
        for j in range(3):
            for p in range(3):
                off = (p * 3456 + idx * 576 + j * 256) * 4
                k.salu('s_mov_b32', s(5), off)
                k.bload('buffer_load_dword', T[which * 9 + j * 3 + p], v(4), SM, s(5), 0)
    for which in range(2):
        for j in range(3):
            t0 = T[which * 9 + j * 3]
            k.valu('v_add_f32', t0, t0, T[which * 9 + j * 3 + 1])
            k.valu('v_add_f32', t0, t0, T[which * 9 + j * 3 + 2])
            k.valu('v_cvt_pk_bf16_f32', t0, t0, t0)
            k.valu('v_and_b32', t0, 0xffff0000, t0)
            if which == 0:
                k.valu('v_add_f32', t0, 1.0, t0)
                k.valu('v_cvt_pk_bf16_f32', t0, t0, t0)
                k.valu('v_and_b32', t0, 0xffff0000, t0)
            if outscale is not None:
                k.valu('v_mul_f32', t0, float(outscale), t0)
            k.ds_write('ds_write_b32', v(4), t0, which * 3072 + j * 1024)
    F = v(28, 72)
    for i in range(36):
        k.valu('v_lshlrev_b32', F[2 * i], 16, X[i])
        k.valu('v_and_b32', F[2 * i + 1], 0xffff0000, X[i])
    S0, S1, S2, S3 = v(5), v(6), v(7), v(26)

    def reduce8(r, tmp):
        k.valu('v_add_f32_dpp', tmp, r, r, suffix='quad_perm:[1,0,3,2] row_mask:0xf bank_mask:0xf')
        k.valu('v_add_f32_dpp', r, tmp, tmp, suffix='quad_perm:[2,3,0,1] row_mask:0xf bank_mask:0xf')
        k.valu('v_add_f32_dpp', tmp, r, r, suffix='row_half_mirror row_mask:0xf bank_mask:0xf')
        k.valu('v_mov_b32', r, tmp)

    k.valu('v_add_f32', S0, F[0], F[1])
    k.valu('v_add_f32', S1, F[2], F[3])
    for i in range(4, 72, 2):
        k.valu('v_add_f32', S0, S0, F[i])
        k.valu('v_add_f32', S1, S1, F[i + 1])
    k.valu('v_add_f32', S0, S0, S1)
    reduce8(S0, S1)
    k.valu('v_mul_f32', S0, 1.0 / 576, S0)
    for i in range(72):
        k.valu('v_sub_f32', F[i], F[i], S0)
    k.valu('v_mul_f32', S1, F[0], F[0])
    k.valu('v_mul_f32', S2, F[1], F[1])
    for i in range(2, 72, 2):
        k.valu('v_fmac_f32', S1, F[i], F[i])
        k.valu('v_fmac_f32', S2, F[i + 1], F[i + 1])
    k.valu('v_add_f32', S1, S1, S2)
    reduce8(S1, S2)
    k.valu('v_mov_b32', S2, 1e-5)
    k.valu('v_fmac_f32', S2, 1.0 / 576, S1)
    k.valu('v_rsq_f32', S2, S2)
    k.wait_lgkm0()
    k.barrier()
    k.valu('v_lshlrev_b32', v(4), 5, v(1))
    k.valu('v_lshrrev_b32', v(3), 1, v(1))
    k.valu('v_lshlrev_b32', v(3), 10, v(3))
    k.valu('v_and_b32', v(27), 1, v(1))
    k.valu('v_lshl_add_u32', v(27), v(27), 5, v(2))
    k.valu('v_lshl_add_u32', v(3), v(27), 4, v(3))
    k.salu('s_mul_i32', s(6), s(2), 36864)
    C = [v(136, 16), v(152, 16)]
    OUT = [v(168, 4), v(172, 4)]

    def rd(i):
        c = C[i & 1]
        k.ds_read('ds_read_b128', c.sub(0, 4), v(4), 256 * i)
        k.ds_read('ds_read_b128', c.sub(4, 4), v(4), 256 * i + 16)
        k.ds_read('ds_read_b128', c.sub(8, 4), v(4), 3072 + 256 * i)
        k.ds_read('ds_read_b128', c.sub(12, 4), v(4), 3072 + 256 * i + 16)

    rd(0)
    for i in range(9):
        if i + 1 < 9:
            rd(i + 1)
        c = C[i & 1]
        o = OUT[i & 1]
        for j in range(8):
            f = F[8 * i + j]
            k.valu('v_mul_f32', f, f, S2)
            k.valu('v_fma_f32', f, f, c[j], c[8 + j])
        for j in range(4):
            k.valu('v_cvt_pk_bf16_f32', o[j], F[8 * i + 2 * j], F[8 * i + 2 * j + 1])
        k.bstore('buffer_store_dwordx4', o, v(3), SO, s(6), 0, 'sc1')
        if i + 1 < 9:
            k.salu('s_add_u32', s(6), s(6), 4096)
    k.label(f'{name}_end')
    k.endpgm()
    return k, (64, 256, 6144)
```

```python
COST = {'valu': 4, 'trans': 8, 'ds_read': 4, 'ds_write': 8, 'vm_load': 8, 'vm_store': 8, 'dma': 8, 'salu': 4,
        'barrier': 4, 'wait_tag': 4, 'wait_lgkm0': 4, 'wait_vm0': 4, 'nop': 4, 'misc': 4, 'comment': 0,
        'label': 0, 'smem_nowait': 4, 'branch': 4}


def schedule(k, mains, streams, budget=24, verbose=None):
    n = len(mains)
    names = list(streams.keys())
    pos = {nm: 0 for nm in names}
    eff = {}
    for nm in names:
        lst = streams[nm]
        d = [x[2] for x in lst]
        for i in range(len(d) - 2, -1, -1):
            d[i] = min(d[i], d[i + 1])
        eff[nm] = d
        for (ins, e, dl), de in zip(lst, d):
            assert e <= de, f'stream {nm}: {ins.text} earliest {e} > deadline {de} (own {dl})'
    over = 0
    for g in range(n + 1):
        used = 0
        while True:
            best = None
            for nm in names:
                p = pos[nm]
                if p >= len(streams[nm]):
                    continue
                ins, e, _ = streams[nm][p]
                if e > g:
                    continue
                dl = eff[nm][p]
                if best is None or dl < best[0]:
                    best = (dl, nm)
            if best is None:
                break
            dl, nm = best
            ins = streams[nm][pos[nm]][0]
            c = COST[ins.kind]
            if dl > g and used + c > budget and g < n:
                break
            k.add(ins)
            used += c
            pos[nm] += 1
        if used > budget and 0 < g < n:
            over += used - budget
        if g < n:
            k.add(mains[g])
    for nm in names:
        assert pos[nm] == len(streams[nm]), nm
    if verbose:
        print(f'{verbose}: {n} mains, over-budget cycles {over}')
    return over
```

```python
import sys, importlib
from common import *
import k_small

HEADER = open('adaLN_cond__sliding_block_cached__swiglu_ffn__prompt.s.ref').read().split('; Override launch')[0]

def build(kernels, path):
    out = [HEADER.rstrip('\n')]
    for k, (g, b, lds) in kernels:
        out.append(f'; @launch kernel={k.name} grid=({g},1,1) block=({b},1,1) lds={lds}')
    out.append('.amdgcn_target "amdgcn-amd-amdhsa--gfx950"')
    out.append('.text')
    seen = set()
    descs = []
    for k, _ in kernels:
        if k.name in seen: continue
        seen.add(k.name)
        out.append(k.finalize())
        descs.append(k.descriptor())
        print(k.name, k.stats(), 'maxv', k.maxv, 'maxa', k.maxa, 'maxs', k.maxs, file=sys.stderr)
    out.append('.section .rodata,"a"')
    out += descs
    txt = '\n'.join(out) + '\n'
    open(path, 'w').write(txt)
    print('bytes', len(txt), file=sys.stderr)

def all_kernels(upto=99):
    ks = [k_small.gen_mod(), k_small.gen_ln('ln1_kernel', 'x', 'ws:h', 0, 1, LOG2E * 128 ** -0.5)]
    try:
        import k_attn
        ks.append(k_attn.gen_attn())
        import k_gemm
        ks.append(k_gemm.gen_proj('oproj_kernel', 0))
        ks.append(k_small.gen_ln('ln2_kernel', 'ws:x1', 'ws:h2', 3, 4, src_frag=True))
        import k_ffn
        ks.append(k_ffn.gen_gateup())
        ks.append(k_gemm.gen_proj('down_kernel', 1))
    except ImportError as e:
        print('partial build:', e, file=sys.stderr)
    return ks[:upto]

if __name__ == '__main__':
    path = sys.argv[1] if len(sys.argv) > 1 else 'out.s'
    upto = int(sys.argv[2]) if len(sys.argv) > 2 else 99
    build(all_kernels(upto), path)
```
